```python
import torch

def _softmax(x, axis=-1):
    return torch.softmax(x, dim=axis)
def _gelu(x):
    return torch.nn.functional.gelu(x, approximate="tanh")
def _silu(x):
    return torch.nn.functional.silu(x)
def _sigmoid(x):
    return torch.sigmoid(x)
def _layernorm(x, axis=-1, eps=1e-5):
    m = x.mean(dim=axis, keepdim=True)
    v = x.var(dim=axis, keepdim=True, unbiased=False)
    return (x - m) / torch.sqrt(v + eps)
def _scatter_add(tgt, idx, src, axis=0):
    return tgt.clone().index_add_(axis, idx, src)
def _segment_sum(src, seg, n):
    out = torch.zeros((n,) + src.shape[1:], dtype=src.dtype)
    return out.index_add_(0, seg, src)
def _pad(x, pw):
    flat = tuple(v for pair in reversed(pw) for v in pair)
    return torch.nn.functional.pad(x, flat)

kernel_name = 'gather_scatter__molecular_angular_gemnet__graph'

def setup_inputs():

    _w = (lambda a: (lambda t: t.to(torch.bfloat16) if t.is_floating_point() else t)(torch.as_tensor(a)))
    N, deg, De, L = 50000, 16, 4, 1
    E = N * deg
    T = E * deg
    NR = 8
    dist = torch.rand(E).to(float)
    angle = (torch.rand(T) * torch.pi).to(float)
    centers = torch.linspace(0.0, 1.0, NR).to(float)
    ang_freq = torch.arange(1, L + 1).to(float)
    return {
        "m": _w((lambda *s: torch.randn(*s, dtype=torch.bfloat16) * 0.05)(E, De)),
        "idx_in": _w((lambda lo, hi, *s: torch.randint(lo, hi, s))(0, E, T).to(torch.int64)),
        "idx_out": _w((lambda lo, hi, *s: torch.randint(lo, hi, s))(0, E, T).to(torch.int64)),
        "dist": _w(dist),
        "angle": _w(angle),
        "centers": _w(centers),
        "ang_freq": _w(ang_freq),
        "w_rbf": _w((lambda *s: torch.randn(*s, dtype=torch.bfloat16) * 0.4)(NR, De)),
        "w_sbf": _w((lambda *s: torch.randn(*s, dtype=torch.bfloat16) * 0.4)(NR * L, De)),
        "w_down": _w((lambda *s: torch.randn(*s, dtype=torch.bfloat16) * 0.4)(De, De)),
        "w_up": _w((lambda *s: torch.randn(*s, dtype=torch.bfloat16) * 0.4)(De, De)),
    }

def reference(m, idx_in, idx_out, dist, angle, centers, ang_freq, w_rbf, w_sbf, w_down, w_up):
    E, De = m.shape[0], m.shape[1]
    NR = centers.shape[0]
    L = ang_freq.shape[0]
    rbf = torch.exp(-10.0 * (dist[:, None] - centers[None, :]) ** 2)
    cbf = torch.cos(ang_freq[None, :] * angle[:, None])
    rbf_t = rbf[idx_out]
    sbf = torch.reshape(rbf_t[:, :, None] * cbf[:, None, :], (-1, NR * L))
    x = (m[idx_in] @ w_down) * (sbf @ w_sbf)
    agg = _segment_sum(x, idx_out, E)
    return m + (agg @ w_up) * (rbf @ w_rbf)
```

```python
NAME = "gather_scatter__molecular_angular_gemnet__graph"
E = 800000
T = 12800000

HEADER = """; Kernarg layout for this problem (112 bytes, ptrs only, base s[0:1]):
"""

K_M, K_IN, K_OUT, K_DIST, K_ANG, K_CEN, K_FREQ, K_WRBF, K_WSBF, K_WDOWN, K_WUP, K_DOUT, K_DBG, K_WS = [8 * i for i in range(14)]


class Asm:
    def __init__(self):
        self.lines = []
        self.uid = 0

    def __call__(self, text):
        for l in text.strip("\n").split("\n"):
            l = l.strip()
            if not l:
                continue
            if l.endswith(":") or l.startswith("."):
                self.lines.append(l)
            else:
                self.lines.append("    " + l)

    def label(self, base):
        self.uid += 1
        return "L_%s_%d" % (base, self.uid)

    def text(self):
        return "\n".join(self.lines) + "\n"


def kernel_begin(a, name):
    a(".text")
    a(".globl %s" % name)
    a(".p2align 8")
    a(".type %s,@function" % name)
    a("%s:" % name)


def descriptor(name, vgpr, sgpr, accum=None, extra=""):
    if accum is None:
        accum = (vgpr + 3) // 4 * 4
    return """.p2align 6
.amdhsa_kernel %s
  .amdhsa_next_free_vgpr %d
  .amdhsa_next_free_sgpr %d
  .amdhsa_accum_offset %d
  .amdhsa_group_segment_fixed_size 0
  .amdhsa_kernarg_size 112
  .amdhsa_user_sgpr_count 2
  .amdhsa_user_sgpr_kernarg_segment_ptr 1
  .amdhsa_system_sgpr_workgroup_id_x 1
  .amdhsa_float_denorm_mode_32 3
%s.end_amdhsa_kernel
""" % (name, vgpr, sgpr, accum, extra)


def srd(a, dst, base, nbytes):
    if dst != base:
        a("s_mov_b32 s%d, s%d" % (dst, base))
        a("s_mov_b32 s%d, s%d" % (dst + 1, base + 1))
    a("s_mov_b32 s%d, %d" % (dst + 2, nbytes))
    a("s_mov_b32 s%d, 0x00020000" % (dst + 3))


def assemble_file(launches, body, descs):
    out = HEADER
    for (k, g, b, lds) in launches:
        out += "; @launch kernel=%s grid=(%d,1,1) block=(%d,1,1) lds=%d\n" % (k, g, b, lds)
    out += '.amdgcn_target "amdgcn-amd-amdhsa--gfx950"\n'
    out += body
    out += '.section .rodata,"a"\n'
    for d in descs:
        out += d
    return out
```

```python
from common import *

LOG2E = 0x3fb8aa3b


def load_weights(a, sb):
    p = sb + 52
    a("s_load_dwordx2 s[%d:%d], s[0:1], %d" % (p, p + 1, K_CEN))
    a("s_load_dwordx4 s[%d:%d], s[0:1], %d" % (p + 4, p + 7, K_WRBF))
    a("s_load_dwordx4 s[%d:%d], s[0:1], %d" % (p + 8, p + 11, K_WDOWN))
    a("s_waitcnt lgkmcnt(0)")
    a("s_load_dwordx4 s[%d:%d], s[%d:%d], 0" % (sb, sb + 3, p, p + 1))
    a("s_load_dwordx8 s[%d:%d], s[%d:%d], 0" % (sb + 4, sb + 11, p + 4, p + 5))
    a("s_load_dwordx8 s[%d:%d], s[%d:%d], 32" % (sb + 12, sb + 19, p + 4, p + 5))
    a("s_load_dwordx8 s[%d:%d], s[%d:%d], 0" % (sb + 20, sb + 27, p + 6, p + 7))
    a("s_load_dwordx8 s[%d:%d], s[%d:%d], 32" % (sb + 28, sb + 35, p + 6, p + 7))
    a("s_load_dwordx8 s[%d:%d], s[%d:%d], 0" % (sb + 36, sb + 43, p + 8, p + 9))
    a("s_load_dwordx8 s[%d:%d], s[%d:%d], 0" % (sb + 44, sb + 51, p + 10, p + 11))


def wsrc(a, sb_arr, idx, stmp):
    reg = sb_arr + idx // 2
    if idx % 2 == 0:
        a("s_lshl_b32 s%d, s%d, 16" % (stmp, reg))
    else:
        a("s_and_b32 s%d, s%d, 0xffff0000" % (stmp, reg))
    return "s%d" % stmp


def round2(a, d0, d1, s0, s1, tmp):
    a("v_cvt_pk_bf16_f32 v%d, v%d, v%d" % (tmp, s0, s1))
    a("v_lshlrev_b32 v%d, 16, v%d" % (d0, tmp))
    a("v_and_b32 v%d, 0xffff0000, v%d" % (d1, tmp))


def edge_math(a, sb, st, vS, vM, vD, vT, vOut):
    cen, wrbf, wsbf, wdown, wup = sb, sb + 4, sb + 20, sb + 36, sb + 44
    R = vT
    G = vT + 8
    H = vT + 12
    U = vT + 16
    X = vT + 20
    for r in range(8):
        s = wsrc(a, cen, r, st)
        a("v_subrev_f32 v%d, %s, v%d" % (R + r, s, vD))
    for r in range(0, 8, 2):
        round2(a, R + r, R + r + 1, R + r, R + r + 1, X)
    for r in range(8):
        a("v_mul_f32 v%d, v%d, v%d" % (R + r, R + r, R + r))
    for r in range(0, 8, 2):
        round2(a, R + r, R + r + 1, R + r, R + r + 1, X)
    for r in range(8):
        a("v_mul_f32 v%d, 0xc1200000, v%d" % (R + r, R + r))
    for r in range(0, 8, 2):
        round2(a, R + r, R + r + 1, R + r, R + r + 1, X)
    for r in range(8):
        a("v_mul_f32 v%d, 0x%08x, v%d" % (R + r, LOG2E, R + r))
    for r in range(8):
        a("v_exp_f32 v%d, v%d" % (R + r, R + r))
    a("s_nop 0")
    for r in range(0, 8, 2):
        round2(a, R + r, R + r + 1, R + r, R + r + 1, X)
    for j in range(4):
        for r in range(8):
            s = wsrc(a, wsbf, r * 4 + j, st + (r & 1))
            if r == 0:
                a("v_mul_f32 v%d, %s, v%d" % (G + j, s, R + r))
            else:
                a("v_fmac_f32 v%d, %s, v%d" % (G + j, s, R + r))
    for j in range(4):
        for i in range(4):
            s = wsrc(a, wdown, i * 4 + j, st + (i & 1))
            if i == 0:
                a("v_mul_f32 v%d, %s, v%d" % (H + j, s, vS + i))
            else:
                a("v_fmac_f32 v%d, %s, v%d" % (H + j, s, vS + i))
    for j in range(4):
        a("v_mul_f32 v%d, v%d, v%d" % (H + j, H + j, G + j))
    round2(a, H, H + 1, H, H + 1, X)
    round2(a, H + 2, H + 3, H + 2, H + 3, X)
    for j in range(4):
        for i in range(4):
            s = wsrc(a, wup, i * 4 + j, st + (i & 1))
            if i == 0:
                a("v_mul_f32 v%d, %s, v%d" % (U + j, s, H + i))
            else:
                a("v_fmac_f32 v%d, %s, v%d" % (U + j, s, H + i))
    round2(a, U, U + 1, U, U + 1, X)
    round2(a, U + 2, U + 3, U + 2, U + 3, X)
    for j in range(4):
        for r in range(8):
            s = wsrc(a, wrbf, r * 4 + j, st + (r & 1))
            if r == 0:
                a("v_mul_f32 v%d, %s, v%d" % (G + j, s, R + r))
            else:
                a("v_fmac_f32 v%d, %s, v%d" % (G + j, s, R + r))
    round2(a, G, G + 1, G, G + 1, X)
    round2(a, G + 2, G + 3, G + 2, G + 3, X)
    for j in range(4):
        a("v_mul_f32 v%d, v%d, v%d" % (U + j, U + j, G + j))
    round2(a, U, U + 1, U, U + 1, X)
    round2(a, U + 2, U + 3, U + 2, U + 3, X)
    a("v_lshlrev_b32 v%d, 16, v%d" % (H, vM))
    a("v_and_b32 v%d, 0xffff0000, v%d" % (H + 1, vM))
    a("v_lshlrev_b32 v%d, 16, v%d" % (H + 2, vM + 1))
    a("v_and_b32 v%d, 0xffff0000, v%d" % (H + 3, vM + 1))
    for j in range(4):
        a("v_add_f32 v%d, v%d, v%d" % (U + j, U + j, H + j))
    a("v_cvt_pk_bf16_f32 v%d, v%d, v%d" % (vOut, U, U + 1))
    a("v_cvt_pk_bf16_f32 v%d, v%d, v%d" % (vOut + 1, U + 2, U + 3))
```

```python
import sys
from common import *
from finalize import *

a = Asm()
kernel_begin(a, "zero_kernel")
a("s_load_dwordx2 s[4:5], s[0:1], %d" % K_WS)
a("s_waitcnt lgkmcnt(0)")
srd(a, 4, 4, E * 16)
a("""
s_lshl_b32 s3, s2, 8
v_add_u32 v1, s3, v0
v_lshlrev_b32 v1, 4, v1
v_mov_b32 v4, 0
v_mov_b32 v5, 0
v_mov_b32 v6, 0
v_mov_b32 v7, 0
buffer_store_dwordx4 v[4:7], v1, s[4:7], 0 offen
s_endpgm
""")

kernel_begin(a, "scatter_kernel")
a("""
s_cmp_ge_u32 s2, %d
s_cbranch_scc1 L_sc_done
s_load_dwordx2 s[4:5], s[0:1], %d
s_load_dwordx2 s[8:9], s[0:1], %d
s_load_dwordx2 s[12:13], s[0:1], %d
s_load_dwordx2 s[16:17], s[0:1], %d
s_load_dwordx2 s[20:21], s[0:1], %d
s_load_dwordx2 s[24:25], s[0:1], %d
s_waitcnt lgkmcnt(0)
s_load_dword s26, s[24:25], 0
""" % (T // 256, K_M, K_IN, K_OUT, K_ANG, K_WS, K_FREQ))
srd(a, 4, 4, E * 8)
srd(a, 8, 8, T * 4)
srd(a, 12, 12, T * 4)
srd(a, 16, 16, T * 2)
srd(a, 20, 20, E * 16)
a("""
s_lshl_b32 s3, s2, 8
v_add_u32 v1, s3, v0
v_lshlrev_b32 v2, 2, v1
v_lshlrev_b32 v3, 1, v1
buffer_load_dword v4, v2, s[8:11], 0 offen
buffer_load_dword v5, v2, s[12:15], 0 offen
buffer_load_ushort v6, v3, s[16:19], 0 offen
s_waitcnt vmcnt(2) lgkmcnt(0)
v_lshlrev_b32 v4, 3, v4
buffer_load_dwordx2 v[8:9], v4, s[4:7], 0 offen
s_lshl_b32 s26, s26, 16
s_waitcnt vmcnt(1)
v_lshlrev_b32 v6, 16, v6
v_mul_f32 v6, s26, v6
v_cvt_pk_bf16_f32 v6, v6, v6
v_lshlrev_b32 v6, 16, v6
v_mul_f32 v6, 0.15915494, v6
v_fract_f32 v6, v6
v_cos_f32 v6, v6
s_nop 0
v_cvt_pk_bf16_f32 v6, v6, v6
v_lshlrev_b32 v6, 16, v6
v_lshlrev_b32 v5, 4, v5
s_waitcnt vmcnt(0)
v_lshlrev_b32 v10, 16, v8
v_and_b32 v11, 0xffff0000, v8
v_lshlrev_b32 v12, 16, v9
v_and_b32 v13, 0xffff0000, v9
v_mul_f32 v10, v6, v10
v_mul_f32 v11, v6, v11
v_mul_f32 v12, v6, v12
v_mul_f32 v13, v6, v13
buffer_atomic_add_f32 v10, v5, s[20:23], 0 offen
buffer_atomic_add_f32 v11, v5, s[20:23], 0 offen offset:4
buffer_atomic_add_f32 v12, v5, s[20:23], 0 offen offset:8
buffer_atomic_add_f32 v13, v5, s[20:23], 0 offen offset:12
L_sc_done:
s_endpgm
""")

kernel_begin(a, "final_kernel")
a("""
s_cmp_ge_u32 s2, %d
s_cbranch_scc1 L_fin_done
s_load_dwordx2 s[4:5], s[0:1], %d
s_load_dwordx2 s[8:9], s[0:1], %d
s_load_dwordx2 s[12:13], s[0:1], %d
s_load_dwordx2 s[16:17], s[0:1], %d
""" % (E // 256, K_M, K_DIST, K_DOUT, K_WS))
load_weights(a, 24)
srd(a, 4, 4, E * 8)
srd(a, 8, 8, E * 2)
srd(a, 12, 12, E * 8)
srd(a, 16, 16, E * 16)
a("""
s_lshl_b32 s3, s2, 8
v_add_u32 v1, s3, v0
v_lshlrev_b32 v2, 3, v1
v_lshlrev_b32 v3, 1, v1
v_lshlrev_b32 v1, 4, v1
buffer_load_dwordx4 v[4:7], v1, s[16:19], 0 offen
buffer_load_dwordx2 v[8:9], v2, s[4:7], 0 offen
buffer_load_ushort v10, v3, s[8:11], 0 offen
s_waitcnt vmcnt(0) lgkmcnt(0)
v_lshlrev_b32 v10, 16, v10
""")
edge_math(a, 24, 20, 4, 8, 10, 12, 36)
a("""
buffer_store_dwordx2 v[36:37], v2, s[12:15], 0 offen
L_fin_done:
s_endpgm
""")

launches = [("zero_kernel", E // 256, 256, 0), ("scatter_kernel", T // 256, 256, 0), ("final_kernel", E // 256, 256, 0)]
descs = [descriptor("zero_kernel", 8, 16), descriptor("scatter_kernel", 16, 32), descriptor("final_kernel", 40, 96)]
open(sys.argv[1], "w").write(assemble_file(launches, a.text(), descs))
```

```python
from common import E, T

PO = 32
RO = 25024
NQ = 54
RI = 14864
HQ = NQ // 2
NB = PO * NQ
G = 8
CAP = 1152
MO = -(-(1 << 32) // RO)
MI = -(-(1 << 32) // RI)

NWG1 = 250
ROUNDS = [18, 18, 14]
assert sum(ROUNDS) * 1024 * NWG1 == T

WS_CNT = 0
CNT_BYTES = G * NB * 4
WS_OVFCNT = CNT_BYTES
ZERO_BYTES = 56 * 1024
WS_STATS = 0x10000
WS_UT = 0x20000
UT_STRIDE = 0x189000
WS_PART = WS_UT + 4 * UT_STRIDE
PART_STRIDE = PO * RO * 4
WS_RECA = (WS_PART + 8 * PART_STRIDE + 0x20000 + 4095) // 4096 * 4096
RECA_BYTES = NB * G * CAP * 4
WS_RECB = WS_RECA + RECA_BYTES + 0x10000
RECB_BYTES = NB * G * CAP * 2
WS_OVF = WS_RECB + RECB_BYTES
assert WS_OVF % 16 == 0 and WS_OVF + T * 8 <= (1 << 28)
```

```python
from common import *
from params import *

HIST = 0
DELTA = 8192
WT = DELTA + NB * 4
FLAG = WT + 64
SMAX = WT + 68
STG = WT + 128
LDS1 = STG + max(ROUNDS) * 1024 * 8
BIAS = max(ROUNDS) * 1024 * 4
assert LDS1 <= 163840

S_IN, S_OUT, S_ANG, S_RA, S_RB, S_CNT, S_MISC, S_DBG = 4, 8, 12, 16, 20, 24, 28, 32
S_WD = 36
S_WT = 44
S_MO, S_MI, S_NRO, S_NRI, S_SEL0, S_SEL1, S_STG, S_WAVE = 52, 53, 54, 55, 56, 57, 58, 59
S_FREQ = 60
S_I2P = 62
S_M63 = 64
S_M864 = 66
S_T0 = 68
S_BASE4, S_BASE2 = 80, 81
S_WS = 82
S_CAP = 84

V_IN, V_OUT, V_ANG = 2, 20, 38
V_AB = 48
V_RK = 84
V_T4, V_T8, V_T16 = 102, 103, 104
V_ONE, V_RB, V_W4, V_L16 = 105, 106, 107, 1
V_C0, V_G0, V_B0 = 108, 110, 112
V_TMP = 114
V_POLL = 47
NV1 = 126


def issue_raw(a, rnd, nt):
    k = ROUNDS[rnd]
    start = sum(ROUNDS[:rnd]) * 1024
    f = " nt" if nt else ""
    n = 0
    for v in range(k // 4):
        off = start + v * 4096
        a("s_add_u32 s%d, s%d, %d" % (S_T0, S_BASE4, off * 4))
        a("s_add_u32 s%d, s%d, %d" % (S_T0 + 1, S_BASE2, off * 2))
        a("buffer_load_dwordx4 v[%d:%d], v%d, s[%d:%d], s%d offen%s" % (V_IN + 4 * v, V_IN + 4 * v + 3, V_T16, S_IN, S_IN + 3, S_T0, f))
        a("buffer_load_dwordx4 v[%d:%d], v%d, s[%d:%d], s%d offen%s" % (V_OUT + 4 * v, V_OUT + 4 * v + 3, V_T16, S_OUT, S_OUT + 3, S_T0, f))
        a("buffer_load_dwordx2 v[%d:%d], v%d, s[%d:%d], s%d offen%s" % (V_ANG + 2 * v, V_ANG + 2 * v + 1, V_T8, S_ANG, S_ANG + 3, S_T0 + 1, f))
        n += 3
    assert k % 4 == 2
    v = k // 4
    off = start + v * 4096
    a("s_add_u32 s%d, s%d, %d" % (S_T0, S_BASE4, off * 4))
    a("s_add_u32 s%d, s%d, %d" % (S_T0 + 1, S_BASE2, off * 2))
    a("buffer_load_dwordx2 v[%d:%d], v%d, s[%d:%d], s%d offen%s" % (V_IN + 4 * v, V_IN + 4 * v + 1, V_T8, S_IN, S_IN + 3, S_T0, f))
    a("buffer_load_dwordx2 v[%d:%d], v%d, s[%d:%d], s%d offen%s" % (V_OUT + 4 * v, V_OUT + 4 * v + 1, V_T8, S_OUT, S_OUT + 3, S_T0, f))
    a("buffer_load_dword v%d, v%d, s[%d:%d], s%d offen%s" % (V_ANG + 2 * v, V_T4, S_ANG, S_ANG + 3, S_T0 + 1, f))
    return n + 3


def classify_pair(a, r):
    t = V_TMP
    ang = V_ANG + r // 2
    a("v_lshlrev_b32 v%d, 16, v%d" % (t, ang))
    a("v_and_b32 v%d, 0xffff0000, v%d" % (t + 1, ang))
    a("v_pk_mul_f32 v[%d:%d], v[%d:%d], s[%d:%d]" % (t, t + 1, t, t + 1, S_FREQ, S_FREQ + 1))
    for i in range(2):
        a("v_mul_hi_u32_u24 v%d, s%d, v%d" % (t + 2 + i, S_MO, V_OUT + r + i))
        a("v_mul_hi_u32_u24 v%d, s%d, v%d" % (t + 4 + i, S_MI, V_IN + r + i))
    a("v_cvt_pk_bf16_f32 v%d, v%d, v%d" % (t + 1, t, t + 1))
    for i in range(2):
        a("v_mad_u32_u24 v%d, v%d, %d, v%d" % (t + 6 + i, t + 2 + i, NQ, t + 4 + i))
    a("v_lshlrev_b32 v%d, 16, v%d" % (t, t + 1))
    a("v_and_b32 v%d, 0xffff0000, v%d" % (t + 1, t + 1))
    for i in range(2):
        a("v_lshlrev_b32 v%d, 2, v%d" % (t + 6 + i, t + 6 + i))
    a("v_pk_mul_f32 v[%d:%d], v[%d:%d], s[%d:%d]" % (t, t + 1, t, t + 1, S_I2P, S_I2P + 1))
    for i in range(2):
        a("ds_add_rtn_u32 v%d, v%d, v%d offset:%d" % (V_RK + r + i, t + 6 + i, V_ONE, HIST))
    for i in range(2):
        a("v_fract_f32 v%d, v%d" % (t + i, t + i))
    for i in range(2):
        a("v_mad_i32_i24 v%d, v%d, s%d, v%d" % (t + 2 + i, t + 2 + i, S_NRO, V_OUT + r + i))
    for i in range(2):
        a("v_cos_f32 v%d, v%d" % (t + i, t + i))
    for i in range(2):
        a("v_mad_i32_i24 v%d, v%d, s%d, v%d" % (t + 4 + i, t + 4 + i, S_NRI, V_IN + r + i))
    a("v_cvt_pk_bf16_f32 v%d, v%d, v%d" % (t, t, t + 1))
    for i in range(2):
        a("v_lshl_add_u32 v%d, v%d, 18, 16" % (t + 4 + i, t + 4 + i))
    for i in range(2):
        a("v_perm_b32 v%d, v%d, v%d, s%d" % (V_AB + 2 * (r + i) + 1, t + 6 + i, t, S_SEL0 + i))
    for i in range(2):
        a("v_lshl_add_u32 v%d, v%d, 2, v%d" % (V_AB + 2 * (r + i), t + 2 + i, t + 4 + i))


def wave_scan(a, v, full):
    for sh in (1, 2, 4, 8):
        a("s_nop 1")
        a("v_add_u32_dpp v%d, v%d, v%d row_shr:%d row_mask:0xf bank_mask:0xf bound_ctrl:0" % (v, v, v, sh))
    if full:
        a("s_nop 1")
        a("v_add_u32_dpp v%d, v%d, v%d row_bcast:15 row_mask:0xa bank_mask:0xf" % (v, v, v))
        a("s_nop 1")
        a("v_add_u32_dpp v%d, v%d, v%d row_bcast:31 row_mask:0xc bank_mask:0xf" % (v, v, v))


def wave_max(a, v):
    for sh in (1, 2, 4, 8):
        a("s_nop 1")
        a("v_max_u32_dpp v%d, v%d, v%d row_shr:%d row_mask:0xf bank_mask:0xf bound_ctrl:0" % (v, v, v, sh))
    a("s_nop 1")
    a("v_max_u32_dpp v%d, v%d, v%d row_bcast:15 row_mask:0xa bank_mask:0xf" % (v, v, v))
    a("s_nop 1")
    a("v_max_u32_dpp v%d, v%d, v%d row_bcast:31 row_mask:0xc bank_mask:0xf" % (v, v, v))


def side_job(a):
    m = V_AB
    u = V_AB + 8
    p = V_AB + 24
    for r in range(4):
        for j in range(4):
            a("v_dot2_f32_bf16 v%d, v%d, s%d, 0" % (u + 4 * j + r, m + 2 * r, S_WT + j))
    for r in range(4):
        for j in range(4):
            a("v_dot2_f32_bf16 v%d, v%d, s%d, v%d" % (u + 4 * j + r, m + 2 * r + 1, S_WT + 4 + j, u + 4 * j + r))
    a("s_nop 2")
    for j in range(4):
        a("v_cvt_pk_bf16_f32 v%d, v%d, v%d" % (p + 2 * j, u + 4 * j, u + 4 * j + 1))
        a("v_cvt_pk_bf16_f32 v%d, v%d, v%d" % (p + 2 * j + 1, u + 4 * j + 2, u + 4 * j + 3))
    t = V_TMP
    a("v_mov_b32 v%d, 0x80000000" % t)
    a("v_cmp_gt_u32 vcc, 800, v0")
    a("s_mul_i32 s%d, s2, %d" % (S_T0, 3200 * 2))
    a("s_nop 0")
    a("v_cndmask_b32 v%d, v%d, v%d, vcc" % (t, t, V_T8))
    for j in range(4):
        a("buffer_store_dwordx2 v[%d:%d], v%d, s[%d:%d], s%d offen" % (p + 2 * j, p + 2 * j + 1, t, S_MISC, S_MISC + 3, S_T0))
        if j < 3:
            a("s_add_u32 s%d, s%d, %d" % (S_T0, S_T0, UT_STRIDE))
    a("v_mov_b32 v%d, 0x7fff7fff" % (t + 1))
    for k in range(8):
        a("v_and_b32 v%d, v%d, v%d" % (u + k, t + 1, p + k))
    for k in (0, 2, 4, 6):
        a("v_pk_max_u16 v%d, v%d, v%d" % (u + k, u + k, u + k + 1))
    a("v_pk_max_u16 v%d, v%d, v%d" % (u, u, u + 2))
    a("v_pk_max_u16 v%d, v%d, v%d" % (u + 4, u + 4, u + 6))
    a("v_pk_max_u16 v%d, v%d, v%d" % (u, u, u + 4))
    a("v_lshrrev_b32 v%d, 16, v%d" % (u + 1, u))
    a("v_and_b32 v%d, 0xffff, v%d" % (u, u))
    a("v_max_u32 v%d, v%d, v%d" % (u, u, u + 1))
    wave_max(a, u)
    a("v_mov_b32 v%d, %d" % (u + 1, SMAX))
    a("s_mov_b64 exec, s[%d:%d]" % (S_M63, S_M63 + 1))
    a("ds_max_u32 v%d, v%d" % (u + 1, u))
    a("s_mov_b64 exec, -1")
    return 4


def gen_pass1(a, name, nt_loads=True, group_shift=0, store_flag=""):
    kernel_begin(a, name)
    done = a.label("p1done")
    a("s_cmp_ge_u32 s2, %d" % NWG1)
    a("s_cbranch_scc1 %s" % done)
    a("s_load_dwordx2 s[%d:%d], s[0:1], %d" % (S_MISC, S_MISC + 1, K_M))
    a("s_load_dwordx2 s[%d:%d], s[0:1], %d" % (S_IN, S_IN + 1, K_IN))
    a("s_load_dwordx2 s[%d:%d], s[0:1], %d" % (S_OUT, S_OUT + 1, K_OUT))
    a("s_load_dwordx2 s[%d:%d], s[0:1], %d" % (S_ANG, S_ANG + 1, K_ANG))
    a("s_load_dwordx2 s[%d:%d], s[0:1], %d" % (S_T0, S_T0 + 1, K_FREQ))
    a("s_load_dwordx2 s[%d:%d], s[0:1], %d" % (S_T0 + 2, S_T0 + 3, K_WDOWN))
    a("s_load_dwordx2 s[%d:%d], s[0:1], %d" % (S_DBG, S_DBG + 1, K_DBG))
    a("s_load_dwordx2 s[%d:%d], s[0:1], %d" % (S_WS, S_WS + 1, K_WS))
    a("v_lshlrev_b32 v%d, 2, v0" % V_T4)
    a("v_lshlrev_b32 v%d, 3, v0" % V_T8)
    a("v_lshlrev_b32 v%d, 4, v0" % V_T16)
    a("v_lshrrev_b32 v%d, 6, v0" % V_W4)
    a("v_and_b32 v%d, 15, v0" % V_L16)
    a("v_readfirstlane_b32 s%d, v%d" % (S_WAVE, V_W4))
    a("v_lshlrev_b32 v%d, 2, v%d" % (V_W4, V_W4))
    a("v_lshlrev_b32 v%d, 2, v%d" % (V_L16, V_L16))
    a("v_mov_b32 v%d, 1" % V_ONE)
    a("v_mov_b32 v%d, 0" % V_TMP)
    a("v_mov_b32 v%d, 0" % (V_TMP + 1))
    a("ds_write_b64 v%d, v[%d:%d] offset:%d" % (V_T8, V_TMP, V_TMP + 1, HIST))
    a("ds_write_b64 v%d, v[%d:%d] offset:%d" % (V_TMP, V_TMP, V_TMP + 1, FLAG))
    a("s_mul_i32 s%d, s2, %d" % (S_BASE4, sum(ROUNDS) * 1024 * 4))
    a("s_lshr_b32 s%d, s%d, 1" % (S_BASE2, S_BASE4))
    a("s_waitcnt lgkmcnt(0)")
    a("s_load_dword s%d, s[%d:%d], 0" % (S_FREQ, S_T0, S_T0 + 1))
    a("s_load_dwordx8 s[%d:%d], s[%d:%d], 0" % (S_WD, S_WD + 7, S_T0 + 2, S_T0 + 3))
    srd(a, S_IN, S_IN, T * 4)
    srd(a, S_OUT, S_OUT, T * 4)
    srd(a, S_ANG, S_ANG, T * 2)
    srd(a, S_DBG, S_DBG, 256)
    a("s_mul_i32 s%d, s2, %d" % (S_T0 + 4, 3200 * 8))
    a("s_add_u32 s%d, s%d, s%d" % (S_MISC, S_MISC, S_T0 + 4))
    a("s_addc_u32 s%d, s%d, 0" % (S_MISC + 1, S_MISC + 1))
    srd(a, S_MISC, S_MISC, 3200 * 8)
    a("s_barrier")

    noticket = a.label("noticket")
    a("s_cmp_lg_u32 s%d, 15" % S_WAVE)
    a("s_cbranch_scc1 %s" % noticket)
    t = V_TMP
    a("v_mov_b32 v%d, 1" % (t + 2))
    a("s_mov_b64 exec, 1")
    a("buffer_atomic_add v%d, v%d, s[%d:%d], 0 offen sc0 sc1" % (t + 2, t, S_DBG, S_DBG + 3))
    a("s_waitcnt vmcnt(0)")
    a("v_readfirstlane_b32 s%d, v%d" % (S_T0 + 4, t + 2))
    a("s_mov_b64 exec, -1")
    a("s_cmp_lg_u32 s%d, 0" % (S_T0 + 4))
    a("s_cbranch_scc1 %s" % noticket)
    srd(a, S_CNT, S_WS, ZERO_BYTES)
    a("v_mov_b32 v%d, 0" % (t + 2))
    a("v_mov_b32 v%d, 0" % (t + 3))
    a("v_and_b32 v%d, 0x3ff, v%d" % (t + 4, V_T16))
    a("s_mov_b32 s%d, 0" % (S_T0 + 4))
    zl = a.label("zero")
    a(zl + ":")
    a("buffer_store_dwordx4 v[%d:%d], v%d, s[%d:%d], s%d offen sc0 sc1" % (t, t + 3, t + 4, S_CNT, S_CNT + 3, S_T0 + 4))
    a("s_add_u32 s%d, s%d, 1024" % (S_T0 + 4, S_T0 + 4))
    a("s_cmp_lt_u32 s%d, %d" % (S_T0 + 4, ZERO_BYTES))
    a("s_cbranch_scc1 %s" % zl)
    a("s_waitcnt vmcnt(0)")
    a("s_mov_b64 exec, 1")
    a("buffer_atomic_add v%d, v%d, s[%d:%d], 0 offen offset:64 sc1" % (V_ONE, t, S_DBG, S_DBG + 3))
    a("s_mov_b64 exec, -1")
    a(noticket + ":")

    a("v_lshlrev_b32 v%d, 5, v0" % (t + 2))
    a("buffer_load_dwordx4 v[%d:%d], v%d, s[%d:%d], 0 offen" % (V_AB, V_AB + 3, t + 2, S_MISC, S_MISC + 3))
    a("buffer_load_dwordx4 v[%d:%d], v%d, s[%d:%d], 0 offen offset:16" % (V_AB + 4, V_AB + 7, t + 2, S_MISC, S_MISC + 3))
    nraw = issue_raw(a, 0, nt_loads)

    a("s_mov_b32 s%d, %d" % (S_MO, MO))
    a("s_mov_b32 s%d, %d" % (S_MI, MI))
    a("s_mov_b32 s%d, %d" % (S_NRO, -RO))
    a("s_mov_b32 s%d, %d" % (S_NRI, -RI))
    a("s_mov_b32 s%d, 0x05040100" % S_SEL0)
    a("s_mov_b32 s%d, 0x05040302" % S_SEL1)
    a("s_mov_b32 s%d, %d" % (S_STG, STG))
    a("s_mov_b32 s%d, 0x3e22f983" % S_I2P)
    a("s_mov_b32 s%d, 0x3e22f983" % (S_I2P + 1))
    a("s_mov_b32 s%d, 0" % S_M63)
    a("s_mov_b32 s%d, 0x80000000" % (S_M63 + 1))
    a("s_mov_b32 s%d, %d" % (S_CAP, CAP))
    a("v_cmp_gt_u32 vcc, %d, v0" % (NB // 2))
    a("s_mov_b64 s[%d:%d], vcc" % (S_M864, S_M864 + 1))
    g = S_T0 + 5
    if group_shift:
        a("s_lshr_b32 s%d, s2, %d" % (g, group_shift))
        a("s_and_b32 s%d, s%d, 7" % (g, g))
    else:
        a("s_and_b32 s%d, s2, 7" % g)
    a("s_mul_i32 s%d, s%d, %d" % (S_T0 + 4, g, NB * 4))
    a("s_add_u32 s%d, s%d, s%d" % (S_CNT, S_WS, S_T0 + 4))
    a("s_addc_u32 s%d, s%d, 0" % (S_CNT + 1, S_WS + 1))
    srd(a, S_CNT, S_CNT, NB * 4)
    a("s_add_u32 s%d, s%d, %d" % (S_RA, S_WS, WS_RECA - BIAS))
    a("s_addc_u32 s%d, s%d, 0" % (S_RA + 1, S_WS + 1))
    srd(a, S_RA, S_RA, RECA_BYTES + BIAS)
    a("s_add_u32 s%d, s%d, %d" % (S_RB, S_WS, WS_RECB - BIAS // 2))
    a("s_addc_u32 s%d, s%d, 0" % (S_RB + 1, S_WS + 1))
    srd(a, S_RB, S_RB, RECB_BYTES + BIAS // 2)
    a("v_add_u32 v%d, s%d, v%d" % (V_RB, g, V_T16))
    a("s_mov_b32 s%d, %d" % (S_T0 + 4, CAP * 4))
    a("v_mul_lo_u32 v%d, v%d, s%d" % (V_RB, V_RB, S_T0 + 4))
    a("v_add_u32 v%d, %d, v%d" % (V_RB, BIAS, V_RB))
    a("s_waitcnt lgkmcnt(0)")
    a("s_lshl_b32 s%d, s%d, 16" % (S_FREQ, S_FREQ))
    a("s_mov_b32 s%d, s%d" % (S_FREQ + 1, S_FREQ))
    for half in range(2):
        for jj in range(2):
            r0 = S_WD + 4 * half + jj
            r1 = r0 + 2
            a("s_pack_ll_b32_b16 s%d, s%d, s%d" % (S_WT + 4 * half + 2 * jj, r0, r1))
            a("s_pack_hh_b32_b16 s%d, s%d, s%d" % (S_WT + 4 * half + 2 * jj + 1, r0, r1))
    a("s_add_u32 s%d, s%d, %d" % (S_T0 + 6, S_WS, WS_UT))
    a("s_addc_u32 s%d, s%d, 0" % (S_T0 + 7, S_WS + 1))
    a("s_waitcnt vmcnt(%d)" % nraw)
    srd(a, S_MISC, S_T0 + 6, 4 * UT_STRIDE)
    younger = side_job(a)

    for rnd, k in enumerate(ROUNDS):
        last = rnd == len(ROUNDS) - 1
        nvec = (k + 3) // 4
        for v in range(nvec):
            a("s_waitcnt vmcnt(%d)" % (younger + 3 * (nvec - 1 - v)))
            if rnd == 0 and v == 0:
                nopoll = a.label("nopoll")
                a("s_cmp_lg_u32 s%d, 0" % S_WAVE)
                a("s_cbranch_scc1 %s" % nopoll)
                a("v_mov_b32 v%d, 0" % V_POLL)
                a("s_mov_b64 exec, 1")
                a("buffer_atomic_add v%d, v%d, s[%d:%d], 0 offen offset:64 sc0 sc1" % (V_POLL, V_T4, S_DBG, S_DBG + 3))
                a("s_mov_b64 exec, -1")
                a(nopoll + ":")
            for r in range(4 * v, min(4 * v + 4, k), 2):
                classify_pair(a, r)
        if rnd == 0:
            ready = a.label("ready")
            again = a.label("again")
            a("s_cmp_lg_u32 s%d, 0" % S_WAVE)
            a("s_cbranch_scc1 %s" % ready)
            a("s_mov_b32 s%d, 0" % (S_T0 + 5))
            a(again + ":")
            a("s_add_u32 s%d, s%d, 1" % (S_T0 + 5, S_T0 + 5))
            a("s_cmp_gt_u32 s%d, 100000" % (S_T0 + 5))
            a("s_cbranch_scc1 %s" % ready)
            a("s_waitcnt vmcnt(0)")
            a("v_readfirstlane_b32 s%d, v%d" % (S_T0 + 4, V_POLL))
            a("s_cmp_lg_u32 s%d, 0" % (S_T0 + 4))
            a("s_cbranch_scc1 %s" % ready)
            a("s_sleep 4")
            a("s_mov_b64 exec, 1")
            a("buffer_atomic_add v%d, v%d, s[%d:%d], 0 offen offset:64 sc0 sc1" % (V_POLL, V_T4, S_DBG, S_DBG + 3))
            a("s_mov_b64 exec, -1")
            a("s_branch %s" % again)
            a(ready + ":")
        a("s_waitcnt lgkmcnt(0)")
        a("s_barrier")

        a("ds_read_b64 v[%d:%d], v%d offset:%d" % (V_C0, V_C0 + 1, V_T8, HIST))
        if rnd == 0:
            a("v_mov_b32 v%d, 0" % (t + 6))
            a("ds_read_b32 v%d, v%d offset:%d" % (t + 5, t + 6, SMAX))
        a("s_waitcnt lgkmcnt(0)")
        a("v_mov_b32 v%d, v%d" % (V_G0, V_C0))
        a("v_mov_b32 v%d, v%d" % (V_G0 + 1, V_C0 + 1))
        if rnd == 0:
            a("s_add_u32 s%d, s%d, %d" % (S_T0 + 6, S_WS, WS_STATS))
            a("s_addc_u32 s%d, s%d, 0" % (S_T0 + 7, S_WS + 1))
            srd(a, S_MISC, S_T0 + 6, NWG1 * 4)
            a("s_lshl_b32 s%d, s2, 2" % (S_T0 + 4))
            a("v_mov_b32 v%d, s%d" % (t + 6, S_T0 + 4))
            a("v_lshl_add_u32 v%d, v0, 12, v%d" % (t + 6, t + 6))
            a("buffer_store_dword v%d, v%d, s[%d:%d], 0 offen" % (t + 5, t + 6, S_MISC, S_MISC + 3))
        a("buffer_atomic_add_x2 v[%d:%d], v%d, s[%d:%d], 0 offen sc0 sc1" % (V_G0, V_G0 + 1, V_T8, S_CNT, S_CNT + 3))
        nraw = 0 if last else issue_raw(a, rnd + 1, nt_loads)
        a("v_add_u32 v%d, v%d, v%d" % (t, V_C0, V_C0 + 1))
        a("v_mov_b32 v%d, v%d" % (t + 1, t))
        wave_scan(a, t + 1, True)
        a("s_mov_b64 exec, s[%d:%d]" % (S_M63, S_M63 + 1))
        a("ds_write_b32 v%d, v%d offset:%d" % (V_W4, t + 1, WT))
        a("s_mov_b64 exec, -1")
        a("s_waitcnt lgkmcnt(0)")
        a("s_barrier")
        a("ds_read_b32 v%d, v%d offset:%d" % (t + 2, V_L16, WT))
        a("v_sub_u32 v%d, v%d, v%d" % (t + 1, t + 1, t))
        a("s_waitcnt lgkmcnt(0)")
        a("v_mov_b32 v%d, v%d" % (t + 3, t + 2))
        wave_scan(a, t + 3, False)
        a("v_sub_u32 v%d, v%d, v%d" % (t + 3, t + 3, t + 2))
        a("s_nop 0")
        a("v_readlane_b32 s%d, v%d, s%d" % (S_T0 + 4, t + 3, S_WAVE))
        a("s_nop 1")
        a("v_add_u32 v%d, s%d, v%d" % (V_B0, S_T0 + 4, t + 1))
        a("v_add_u32 v%d, v%d, v%d" % (V_B0 + 1, V_B0, V_C0))
        a("v_lshl_add_u32 v%d, v%d, 3, s%d" % (t + 4, V_B0, S_STG))
        a("v_lshl_add_u32 v%d, v%d, 3, s%d" % (t + 5, V_B0 + 1, S_STG))
        a("ds_write_b64 v%d, v[%d:%d] offset:%d" % (V_T8, t + 4, t + 5, HIST))
        a("s_waitcnt lgkmcnt(0)")
        a("s_barrier")

        nb = 6
        for r0 in range(0, k, nb):
            rs = range(r0, min(r0 + nb, k))
            for i, r in enumerate(rs):
                a("v_lshrrev_b32 v%d, 16, v%d" % (t + i, V_AB + 2 * r + 1))
                a("ds_read_b32 v%d, v%d offset:%d" % (t + i, t + i, HIST))
            for i, r in enumerate(rs):
                a("s_waitcnt lgkmcnt(%d)" % (len(rs) - 1))
                a("v_lshl_add_u32 v%d, v%d, 3, v%d" % (t + i, V_RK + r, t + i))
                a("ds_write_b64 v%d, v[%d:%d]" % (t + i, V_AB + 2 * r, V_AB + 2 * r + 1))
        a("s_waitcnt vmcnt(%d)" % nraw)
        a("v_add_u32 v%d, v%d, v%d" % (t + 6, V_G0, V_C0))
        a("v_add_u32 v%d, v%d, v%d" % (t + 7, V_G0 + 1, V_C0 + 1))
        a("v_max_u32 v%d, v%d, v%d" % (t + 6, t + 6, t + 7))
        a("v_sub_u32 v%d, v%d, v%d" % (V_G0, V_G0, V_B0))
        a("v_sub_u32 v%d, v%d, v%d" % (V_G0 + 1, V_G0 + 1, V_B0 + 1))
        a("v_cmp_lt_u32 vcc, s%d, v%d" % (S_CAP, t + 6))
        a("v_lshl_add_u32 v%d, v%d, 2, v%d" % (V_G0, V_G0, V_RB))
        a("v_lshl_add_u32 v%d, v%d, 2, v%d" % (V_G0 + 1, V_G0 + 1, V_RB))
        a("v_add_u32 v%d, %d, v%d" % (V_G0 + 1, G * CAP * 4, V_G0 + 1))
        a("s_mov_b64 exec, s[%d:%d]" % (S_M864, S_M864 + 1))
        a("ds_write_b64 v%d, v[%d:%d] offset:%d" % (V_T8, V_G0, V_G0 + 1, DELTA))
        a("s_mov_b64 exec, -1")
        a("s_waitcnt lgkmcnt(0)")
        a("s_barrier")

        if not last:
            a("v_mov_b32 v%d, 0" % (t + 10))
            a("v_mov_b32 v%d, 0" % (t + 11))
            a("ds_write_b64 v%d, v[%d:%d] offset:%d" % (V_T8, t + 10, t + 11, HIST))
        for i in range(3):
            a("v_add_u32 v%d, %d, v%d" % (t + 6 + i, STG + 65536 * i, V_T8))

        def stage_read(r):
            a("ds_read_b64 v[%d:%d], v%d offset:%d" % (V_AB + 2 * r, V_AB + 2 * r + 1, t + 6 + r // 8, (r % 8) * 8192))

        batches = [list(range(r0, min(r0 + nb, k))) for r0 in range(0, k, nb)]
        for r in batches[0]:
            stage_read(r)
        a("s_waitcnt lgkmcnt(0)")
        if not last:
            a("s_barrier")
        younger = 0
        for bi, rs in enumerate(batches):
            for r in rs:
                a("v_lshrrev_b32 v%d, 16, v%d" % (V_RK + r, V_AB + 2 * r + 1))
                a("ds_read_b32 v%d, v%d offset:%d" % (V_RK + r, V_RK + r, DELTA))
            nxt = batches[bi + 1] if bi + 1 < len(batches) else []
            for r in nxt:
                stage_read(r)
            a("s_waitcnt lgkmcnt(%d)" % len(nxt))
            for i, r in enumerate(rs):
                a("v_add_u32 v%d, v%d, v%d" % (V_RK + r, V_RK + r, V_T4))
                a("s_mov_b32 s%d, %d" % (S_T0 + 8, r * 4096))
                a("v_lshrrev_b32 v%d, 1, v%d" % (t + i, V_RK + r))
                a("s_mov_b32 s%d, %d" % (S_T0 + 9, r * 2048))
                a("buffer_store_dword v%d, v%d, s[%d:%d], s%d offen%s" % (V_AB + 2 * r, V_RK + r, S_RA, S_RA + 3, S_T0 + 8, store_flag))
                a("buffer_store_short v%d, v%d, s[%d:%d], s%d offen%s" % (V_AB + 2 * r + 1, t + i, S_RB, S_RB + 3, S_T0 + 9, store_flag))
                younger += 2
            if nxt:
                a("s_waitcnt lgkmcnt(0)")
    a(done + ":")
    a("s_endpgm")
    return descriptor(name, NV1, 96)
```

```python
from common import *
from params import *
from pass1 import wave_max, wave_scan

BUF = 30720
ACC = 2 * BUF
ACC_BYTES = (RO + 4) * 4
RED = ACC + ACC_BYTES
LDS2 = RED + 16
assert LDS2 <= 163840 and ACC <= 65535

S_RA, S_RB, S_UT, S_MISC = 4, 8, 12, 16
S_RABASE, S_RBBASE = 20, 22
S_WS = 24
S_WAVE, S_HALF512, S_MAGIC, S_BIAS, S_SCALE, S_TOT, S_UOFF, S_M0A, S_M0B = 26, 27, 28, 29, 30, 31, 32, 33, 34
S_N = 35
S_J, S_H, S_COMP, S_ODD = 38, 39, 40, 41
S_T0 = 44
S_M63 = 56

V_REC = 2
V_AI = 50
V_M = 58
V_OA, V_OB, V_OXA, V_OXB, V_DMA, V_L8, V_L2, V_CNT = 66, 67, 68, 69, 70, 71, 72, 73
V_T = 74
NV2 = 96


def issue_dma(a, q):
    a("s_mov_b32 m0, s%d" % (S_M0A if q % 2 == 0 else S_M0B))
    a("s_mov_b32 s%d, %d" % (S_UOFF, q * RI * 2))
    a("buffer_load_dwordx4 v%d, s[%d:%d], s%d offen lds" % (V_DMA, S_UT, S_UT + 3, S_UOFF))
    a("buffer_load_dwordx4 v%d, s[%d:%d], s%d offen offset:1024 lds" % (V_DMA, S_UT, S_UT + 3, S_UOFF))
    return 2


def issue_rec(a, q, flag):
    r = V_REC + 16 * (q % 3)
    n = S_N + q % 3
    a("v_readlane_b32 s%d, v%d, %d" % (n, V_CNT, q))
    a("s_add_u32 s%d, s%d, %d" % (S_RA, S_RABASE, q * G * CAP * 4))
    a("s_addc_u32 s%d, s%d, 0" % (S_RA + 1, S_RABASE + 1))
    a("s_add_u32 s%d, s%d, %d" % (S_RB, S_RBBASE, q * G * CAP * 2))
    a("s_addc_u32 s%d, s%d, 0" % (S_RB + 1, S_RBBASE + 1))
    a("s_lshl_b32 s%d, s%d, 2" % (S_RA + 2, n))
    a("s_lshl1_add_u32 s%d, s%d, 3" % (S_RB + 2, n))
    a("s_and_b32 s%d, s%d, -4" % (S_RB + 2, S_RB + 2))
    a("buffer_load_dwordx4 v[%d:%d], v%d, s[%d:%d], 0 offen%s" % (r, r + 3, V_OA, S_RA, S_RA + 3, flag))
    a("buffer_load_dwordx4 v[%d:%d], v%d, s[%d:%d], 0 offen offset:16%s" % (r + 4, r + 7, V_OA, S_RA, S_RA + 3, flag))
    a("buffer_load_dwordx4 v[%d:%d], v%d, s[%d:%d], 0 offen%s" % (r + 8, r + 11, V_OB, S_RB, S_RB + 3, flag))
    a("buffer_load_dwordx2 v[%d:%d], v%d, s[%d:%d], 0 offen%s" % (r + 12, r + 13, V_OXA, S_RA, S_RA + 3, flag))
    a("buffer_load_dword v%d, v%d, s[%d:%d], 0 offen%s" % (r + 14, V_OXB, S_RB, S_RB + 3, flag))
    return 5


def process(a, ra, rb, n, buf):
    for k in range(n):
        a("v_lshrrev_b32 v%d, 17, v%d" % (V_AI + k, ra + k))
        op = "ds_read_u16" if k % 2 == 0 else "ds_read_u16_d16_hi"
        a("%s v%d, v%d offset:%d" % (op, V_M + k, V_AI + k, buf))
    for k in range(n):
        a("v_and_b32 v%d, 0x1fffc, v%d" % (ra + k, ra + k))
    for k in range(n):
        a("s_waitcnt lgkmcnt(%d)" % (n - 1 - k))
        a("v_dot2_f32_bf16 v%d, v%d, v%d, s%d" % (V_AI + k, V_M + k, rb + k // 2, S_MAGIC))
    if n < 4:
        a("s_nop 2")
    for k in range(n):
        a("v_subrev_u32 v%d, s%d, v%d" % (V_AI + k, S_BIAS, V_AI + k))
        a("ds_add_u32 v%d, v%d offset:%d" % (ra + k, V_AI + k, ACC))


def gen_pass2(a, name, rec_flag=""):
    kernel_begin(a, name)
    done = a.label("p2done")
    t = V_T
    a("s_cmp_ge_u32 s2, 256")
    a("s_cbranch_scc1 %s" % done)
    a("s_load_dwordx2 s[%d:%d], s[0:1], %d" % (S_WS, S_WS + 1, K_WS))
    a("v_lshrrev_b32 v%d, 6, v0" % t)
    a("v_and_b32 v%d, 63, v0" % (t + 1))
    a("v_readfirstlane_b32 s%d, v%d" % (S_WAVE, t))
    a("s_and_b32 s%d, s2, 1" % S_H)
    a("s_bfe_u32 s%d, s2, 0x20001" % S_J)
    a("s_lshl_b32 s%d, s%d, 3" % (S_J, S_J))
    a("s_lshr_b32 s%d, s2, 5" % S_T0)
    a("s_add_u32 s%d, s%d, s%d" % (S_J, S_J, S_T0))
    a("s_bfe_u32 s%d, s2, 0x20003" % S_COMP)
    a("s_and_b32 s%d, s%d, 1" % (S_ODD, S_WAVE))
    a("s_lshl_b32 s%d, s%d, 9" % (S_HALF512, S_ODD))
    g = S_T0 + 1
    b0 = S_T0 + 2
    a("s_lshr_b32 s%d, s%d, 1" % (g, S_WAVE))
    a("s_mul_i32 s%d, s%d, %d" % (b0, S_J, NQ))
    a("s_mul_i32 s%d, s%d, %d" % (S_T0 + 3, S_H, HQ))
    a("s_add_u32 s%d, s%d, s%d" % (b0, b0, S_T0 + 3))
    a("s_waitcnt lgkmcnt(0)")
    a("s_mul_i32 s%d, s%d, %d" % (S_T0 + 3, g, NB))
    a("s_add_u32 s%d, s%d, s%d" % (S_T0 + 3, S_T0 + 3, b0))
    a("s_lshl_b32 s%d, s%d, 2" % (S_T0 + 3, S_T0 + 3))
    a("s_add_u32 s%d, s%d, s%d" % (S_MISC, S_WS, S_T0 + 3))
    a("s_addc_u32 s%d, s%d, 0" % (S_MISC + 1, S_WS + 1))
    srd(a, S_MISC, S_MISC, HQ * 4)
    a("v_lshlrev_b32 v%d, 2, v%d" % (t + 2, t + 1))
    a("buffer_load_dword v%d, v%d, s[%d:%d], 0 offen" % (V_CNT, t + 2, S_MISC, S_MISC + 3))
    a("s_add_u32 s%d, s%d, %d" % (S_MISC, S_WS, WS_STATS))
    a("s_addc_u32 s%d, s%d, 0" % (S_MISC + 1, S_WS + 1))
    a("s_mov_b32 s%d, %d" % (S_MISC + 2, NWG1 * 4))
    a("v_lshlrev_b32 v%d, 4, v%d" % (t + 3, t + 1))
    a("buffer_load_dwordx4 v[%d:%d], v%d, s[%d:%d], 0 offen" % (t + 4, t + 7, t + 3, S_MISC, S_MISC + 3))

    a("s_mul_i32 s%d, s%d, %d" % (S_T0 + 3, S_COMP, UT_STRIDE))
    a("s_mul_i32 s%d, s%d, %d" % (S_T0 + 4, S_H, HQ * RI * 2))
    a("s_add_u32 s%d, s%d, s%d" % (S_T0 + 3, S_T0 + 3, S_T0 + 4))
    a("s_add_u32 s%d, s%d, %d" % (S_T0 + 3, S_T0 + 3, WS_UT))
    a("s_add_u32 s%d, s%d, s%d" % (S_UT, S_WS, S_T0 + 3))
    a("s_addc_u32 s%d, s%d, 0" % (S_UT + 1, S_WS + 1))
    srd(a, S_UT, S_UT, HQ * RI * 2 + 1024)
    a("s_min_u32 s%d, s%d, 14" % (S_T0 + 3, S_WAVE))
    a("s_lshl_b32 s%d, s%d, 11" % (S_M0A, S_T0 + 3))
    a("s_add_u32 s%d, s%d, %d" % (S_M0B, S_M0A, BUF))
    a("v_add_u32 v%d, s%d, v%d" % (V_DMA, S_M0A, t + 3))
    issue_dma(a, 0)

    a("s_lshl_b32 s%d, s%d, 3" % (S_T0 + 3, b0))
    a("s_add_u32 s%d, s%d, s%d" % (S_T0 + 3, S_T0 + 3, g))
    a("s_mul_i32 s%d, s%d, %d" % (S_T0 + 3, S_T0 + 3, CAP * 2))
    a("s_add_u32 s%d, s%d, %d" % (S_T0 + 4, S_T0 + 3, WS_RECB))
    a("s_add_u32 s%d, s%d, s%d" % (S_RBBASE, S_WS, S_T0 + 4))
    a("s_addc_u32 s%d, s%d, 0" % (S_RBBASE + 1, S_WS + 1))
    a("s_lshl_b32 s%d, s%d, 1" % (S_T0 + 3, S_T0 + 3))
    a("s_add_u32 s%d, s%d, %d" % (S_T0 + 4, S_T0 + 3, WS_RECA))
    a("s_add_u32 s%d, s%d, s%d" % (S_RABASE, S_WS, S_T0 + 4))
    a("s_addc_u32 s%d, s%d, 0" % (S_RABASE + 1, S_WS + 1))
    a("s_mov_b32 s%d, 0x00020000" % (S_RA + 3))
    a("s_mov_b32 s%d, 0x00020000" % (S_RB + 3))
    a("s_lshl_b32 s%d, s%d, 10" % (S_T0 + 3, S_ODD))
    a("v_add_u32 v%d, s%d, v%d" % (V_OB, S_T0 + 3, t + 3))
    a("v_lshlrev_b32 v%d, 1, v%d" % (V_OA, V_OB))
    a("s_cmp_eq_u32 s%d, 1" % S_ODD)
    a("s_cselect_b32 s%d, 2048, 0x40000000" % (S_T0 + 3))
    a("v_add_u32 v%d, s%d, v%d" % (V_OXB, S_T0 + 3, t + 2))
    a("v_lshlrev_b32 v%d, 1, v%d" % (V_OXA, V_OXB))
    a("v_lshlrev_b32 v%d, 3, v%d" % (V_L8, t + 1))
    a("v_lshlrev_b32 v%d, 1, v%d" % (V_L2, t + 1))
    for k in range(1, 8, 2):
        a("v_mov_b32 v%d, 0" % (V_M + k))
    a("s_mov_b32 s%d, 0" % S_M63)
    a("s_mov_b32 s%d, 0x80000000" % (S_M63 + 1))

    for k in range(4):
        a("v_mov_b32 v%d, 0" % (t + 8 + k))
    a("v_lshlrev_b32 v%d, 4, v0" % (t + 12))
    a("v_add_u32 v%d, %d, v%d" % (t + 12, ACC, t + 12))
    a("v_add_u32 v%d, 65536, v%d" % (t + 13, t + 12))
    nfull = (ACC_BYTES + 16) // 16384
    for k in range(nfull):
        a("ds_write_b128 v%d, v[%d:%d] offset:%d" % (t + 12 + k // 4, t + 8, t + 11, (k % 4) * 16384))
    rem = (ACC_BYTES + 16 - nfull * 16384) // 16
    a("v_cmp_gt_u32 vcc, %d, v0" % rem)
    a("s_and_saveexec_b64 s[%d:%d], vcc" % (S_T0 + 6, S_T0 + 7))
    a("ds_write_b128 v%d, v[%d:%d] offset:%d" % (t + 12 + nfull // 4, t + 8, t + 11, (nfull % 4) * 16384))
    a("s_mov_b64 exec, -1")

    a("s_waitcnt vmcnt(2)")
    a("v_min_u32 v%d, %d, v%d" % (V_CNT, CAP, V_CNT))
    a("v_max3_u32 v%d, v%d, v%d, v%d" % (t + 4, t + 4, t + 5, t + 6))
    a("v_max_u32 v%d, v%d, v%d" % (t + 4, t + 4, t + 7))
    issue_rec(a, 0, rec_flag)
    issue_rec(a, 1, rec_flag)
    wave_max(a, t + 4)
    a("v_mov_b32 v%d, v%d" % (t + 5, V_CNT))
    wave_scan(a, t + 5, True)
    a("s_nop 0")
    a("v_readlane_b32 s%d, v%d, 63" % (S_T0 + 3, t + 4))
    a("v_readlane_b32 s%d, v%d, 63" % (S_TOT, t + 5))
    a("s_lshr_b32 s%d, s%d, 7" % (S_T0 + 3, S_T0 + 3))
    a("s_sub_u32 s%d, s%d, %d" % (S_SCALE, S_T0 + 3, 126 + 19))
    a("s_add_u32 s%d, s%d, 5" % (S_T0 + 3, S_T0 + 3))
    a("s_lshl_b32 s%d, s%d, 23" % (S_MAGIC, S_T0 + 3))
    a("s_or_b32 s%d, s%d, 0x400000" % (S_MAGIC, S_MAGIC))
    a("s_sub_u32 s%d, s%d, %d" % (S_BIAS, S_MAGIC, 1 << 26))
    a("s_cmp_eq_u32 s%d, 1" % S_ODD)
    a("s_cselect_b32 s%d, 0, s%d" % (S_TOT, S_TOT))

    for q in range(HQ):
        r = V_REC + 16 * (q % 3)
        n = S_N + q % 3
        buf = (q % 2) * BUF
        if q == 0:
            a("s_waitcnt vmcnt(5) lgkmcnt(0)")
        else:
            a("s_waitcnt vmcnt(%d)" % (5 if q + 1 < HQ else 0))
        a("s_barrier")
        a("s_sub_i32 s%d, s%d, s%d" % (S_T0, n, S_HALF512))
        a("s_sub_i32 s%d, s%d, 1024" % (S_T0 + 1, n))
        if q + 1 < HQ:
            issue_dma(a, q + 1)
        if q + 2 < HQ:
            issue_rec(a, q + 2, rec_flag)
        a("v_cmpx_gt_i32 vcc, s%d, v%d" % (S_T0, V_L8))
        process(a, r, r + 8, 8, buf)
        a("s_mov_b64 exec, -1")
        skip = a.label("noextra")
        a("s_mul_i32 s%d, s%d, s%d" % (S_T0 + 1, S_T0 + 1, S_ODD))
        a("s_cmp_le_i32 s%d, 0" % (S_T0 + 1))
        a("s_cbranch_scc1 %s" % skip)
        a("v_cmpx_gt_i32 vcc, s%d, v%d" % (S_T0 + 1, V_L2))
        process(a, r + 12, r + 14, 2, buf)
        a("s_mov_b64 exec, -1")
        a(skip + ":")

    a("s_mul_i32 s%d, s%d, 4" % (S_T0, S_H))
    a("s_add_u32 s%d, s%d, s%d" % (S_T0, S_T0, S_COMP))
    a("s_mul_i32 s%d, s%d, %d" % (S_T0, S_T0, PART_STRIDE))
    a("s_mul_i32 s%d, s%d, %d" % (S_T0 + 1, S_J, RO * 4))
    a("s_add_u32 s%d, s%d, s%d" % (S_T0, S_T0, S_T0 + 1))
    a("s_add_u32 s%d, s%d, %d" % (S_T0, S_T0, WS_PART))
    a("s_add_u32 s%d, s%d, s%d" % (S_MISC, S_WS, S_T0))
    a("s_addc_u32 s%d, s%d, 0" % (S_MISC + 1, S_WS + 1))
    a("s_mov_b32 s%d, %d" % (S_MISC + 2, RO * 4))
    a("v_lshlrev_b32 v%d, 4, v0" % (t + 14))
    a("v_mov_b32 v%d, 0" % (t + 15))
    a("s_waitcnt lgkmcnt(0)")
    a("s_barrier")
    nit = (RO * 4 + 16383) // 16384
    rem = (RO * 4 - (nit - 1) * 16384) // 16
    for k in range(nit):
        x = V_REC + 4 * k
        if k == nit - 1:
            for i in range(4):
                a("v_mov_b32 v%d, 0" % (x + i))
            a("v_cmp_gt_u32 vcc, %d, v0" % rem)
            a("s_and_saveexec_b64 s[%d:%d], vcc" % (S_T0 + 6, S_T0 + 7))
        a("ds_read_b128 v[%d:%d], v%d offset:%d" % (x, x + 3, t + 12 + k // 4, (k % 4) * 16384 + 16))
    a("s_mov_b64 exec, -1")
    a("s_mov_b32 s%d, %d" % (S_T0 + 2, 1 << 25))
    for k in range(nit):
        x = V_REC + 4 * k
        y = V_REC + 4 * nit + 4 * (k % 2)
        a("s_waitcnt lgkmcnt(%d)" % (nit - 1 - k))
        for i in range(4):
            a("v_add_u32 v%d, s%d, v%d" % (t, S_T0 + 2, x + i))
            a("v_bfe_i32 v%d, v%d, 0, 26" % (y + i, x + i))
            a("v_lshrrev_b32 v%d, 26, v%d" % (t, t))
            a("v_cvt_f32_i32 v%d, v%d" % (y + i, y + i))
            a("v_add_u32 v%d, v%d, v%d" % (t + 15, t + 15, t))
            a("v_ldexp_f32 v%d, v%d, s%d" % (y + i, y + i, S_SCALE))
        a("buffer_store_dwordx4 v[%d:%d], v%d, s[%d:%d], 0 offen" % (y, y + 3, t + 14, S_MISC, S_MISC + 3))
        a("v_add_u32 v%d, 16384, v%d" % (t + 14, t + 14))
    a(done + ":")
    a("s_endpgm")
    return descriptor(name, NV2, 64)
```

```python
from common import *
from params import *

LOG2E = 0x3fb8aa3b
S_M, S_D, S_O, S_P = 4, 8, 12, 16
S_CEN = 20
S_WS_ = 28
S_WR = 44
S_WU = 60
S_RAW = 68
S_PTR = 96


def unpack2(a, d0, d1, src):
    a("v_lshlrev_b32 v%d, 16, v%d" % (d0, src))
    a("v_and_b32 v%d, 0xffff0000, v%d" % (d1, src))


def round2(a, r0, r1):
    a("v_cvt_pk_bf16_f32 v%d, v%d, v%d" % (r1, r0, r1))
    a("v_lshlrev_b32 v%d, 16, v%d" % (r0, r1))
    a("v_and_b32 v%d, 0xffff0000, v%d" % (r1, r1))


def load_weights(a):
    p = S_RAW
    a("s_load_dwordx2 s[%d:%d], s[0:1], %d" % (p, p + 1, K_CEN))
    a("s_load_dwordx4 s[%d:%d], s[0:1], %d" % (p + 4, p + 7, K_WRBF))
    a("s_load_dwordx2 s[%d:%d], s[0:1], %d" % (p + 2, p + 3, K_WUP))
    a("s_waitcnt lgkmcnt(0)")
    a("s_load_dwordx4 s[%d:%d], s[%d:%d], 0" % (S_CEN + 4, S_CEN + 7, p, p + 1))
    a("s_load_dwordx16 s[%d:%d], s[%d:%d], 0" % (S_WS_, S_WS_ + 15, p + 6, p + 7))
    a("s_load_dwordx16 s[%d:%d], s[%d:%d], 0" % (S_WR, S_WR + 15, p + 4, p + 5))
    a("s_load_dwordx8 s[%d:%d], s[%d:%d], 0" % (S_WU, S_WU + 7, p + 2, p + 3))


def expand_weights(a):
    for k in range(4):
        a("s_lshl_b32 s%d, s%d, 16" % (S_CEN + 2 * k, S_CEN + 4 + k)) if k < 2 else None
        a("s_and_b32 s%d, s%d, 0xffff0000" % (S_CEN + 2 * k + 1, S_CEN + 4 + k)) if k < 2 else None
    a("s_mov_b32 s%d, s%d" % (S_RAW, S_CEN + 6))
    a("s_mov_b32 s%d, s%d" % (S_RAW + 1, S_CEN + 7))
    for k in (2, 3):
        a("s_lshl_b32 s%d, s%d, 16" % (S_CEN + 2 * k, S_RAW + k - 2))
        a("s_and_b32 s%d, s%d, 0xffff0000" % (S_CEN + 2 * k + 1, S_RAW + k - 2))
    for base, npair in ((S_WS_, 4), (S_WR, 4), (S_WU, 2)):
        for k in range(npair):
            b = base + 4 * k
            for i in range(4):
                a("s_mov_b32 s%d, s%d" % (S_RAW + i, b + i))
            a("s_pack_ll_b32_b16 s%d, s%d, s%d" % (b, S_RAW, S_RAW + 2))
            a("s_pack_hh_b32_b16 s%d, s%d, s%d" % (b + 1, S_RAW, S_RAW + 2))
            a("s_pack_ll_b32_b16 s%d, s%d, s%d" % (b + 2, S_RAW + 1, S_RAW + 3))
            a("s_pack_hh_b32_b16 s%d, s%d, s%d" % (b + 3, S_RAW + 1, S_RAW + 3))


def gates(a, vD, R, GS, GR):
    for r in range(8):
        a("v_subrev_f32 v%d, s%d, v%d" % (R + r, S_CEN + r, vD))
    for r in range(0, 8, 2):
        round2(a, R + r, R + r + 1)
    for r in range(0, 8, 2):
        a("v_pk_mul_f32 v[%d:%d], v[%d:%d], v[%d:%d]" % (R + r, R + r + 1, R + r, R + r + 1, R + r, R + r + 1))
    for r in range(0, 8, 2):
        round2(a, R + r, R + r + 1)
    for r in range(8):
        a("v_mul_f32 v%d, 0xc1200000, v%d" % (R + r, R + r))
    for r in range(0, 8, 2):
        round2(a, R + r, R + r + 1)
    for r in range(8):
        a("v_mul_f32 v%d, 0x%08x, v%d" % (R + r, LOG2E, R + r))
    for r in range(8):
        a("v_exp_f32 v%d, v%d" % (R + r, R + r))
    a("s_nop 0")
    for k in range(4):
        a("v_cvt_pk_bf16_f32 v%d, v%d, v%d" % (R + k, R + 2 * k, R + 2 * k + 1))
    for k in range(4):
        for j in range(4):
            a("v_dot2_f32_bf16 v%d, v%d, s%d, %s" % (GS + j, R + k, S_WS_ + 4 * k + j, "0" if k == 0 else "v%d" % (GS + j)))
        for j in range(4):
            a("v_dot2_f32_bf16 v%d, v%d, s%d, %s" % (GR + j, R + k, S_WR + 4 * k + j, "0" if k == 0 else "v%d" % (GR + j)))
    a("s_nop 2")
    round2(a, GR, GR + 1)
    round2(a, GR + 2, GR + 3)


def combine(a, S, GS, GR, vM, R, vOut):
    for j in range(4):
        a("v_mul_f32 v%d, v%d, v%d" % (GS + j, GS + j, S[j]))
    a("v_cvt_pk_bf16_f32 v%d, v%d, v%d" % (R, GS, GS + 1))
    a("v_cvt_pk_bf16_f32 v%d, v%d, v%d" % (R + 1, GS + 2, GS + 3))
    for k in range(2):
        for j in range(4):
            a("v_dot2_f32_bf16 v%d, v%d, s%d, %s" % (GS + j, R + k, S_WU + 4 * k + j, "0" if k == 0 else "v%d" % (GS + j)))
    unpack2(a, R + 2, R + 3, vM)
    unpack2(a, R + 4, R + 5, vM + 1)
    round2(a, GS, GS + 1)
    round2(a, GS + 2, GS + 3)
    for j in (0, 2):
        a("v_pk_mul_f32 v[%d:%d], v[%d:%d], v[%d:%d]" % (GS + j, GS + j + 1, GS + j, GS + j + 1, GR + j, GR + j + 1))
    round2(a, GS, GS + 1)
    round2(a, GS + 2, GS + 3)
    for j in (0, 2):
        a("v_pk_add_f32 v[%d:%d], v[%d:%d], v[%d:%d]" % (GS + j, GS + j + 1, GS + j, GS + j + 1, R + 2 + j, R + 3 + j))
    a("v_cvt_pk_bf16_f32 v%d, v%d, v%d" % (vOut, GS, GS + 1))
    a("v_cvt_pk_bf16_f32 v%d, v%d, v%d" % (vOut + 1, GS + 2, GS + 3))


NWG3 = (E // 2 + 255) // 256


def gen_pass3(a, name):
    kernel_begin(a, name)
    done = a.label("p3done")
    a("s_cmp_ge_u32 s2, %d" % NWG3)
    a("s_cbranch_scc1 %s" % done)
    a("s_load_dwordx2 s[%d:%d], s[0:1], %d" % (S_M, S_M + 1, K_M))
    a("s_load_dwordx2 s[%d:%d], s[0:1], %d" % (S_D, S_D + 1, K_DIST))
    a("s_load_dwordx2 s[%d:%d], s[0:1], %d" % (S_O, S_O + 1, K_DOUT))
    a("s_load_dwordx2 s[%d:%d], s[0:1], %d" % (S_P, S_P + 1, K_WS))
    load_weights(a)
    srd(a, S_M, S_M, E * 8)
    srd(a, S_D, S_D, E * 2)
    srd(a, S_O, S_O, E * 8)
    a("s_add_u32 s%d, s%d, %d" % (S_P, S_P, WS_PART))
    a("s_addc_u32 s%d, s%d, 0" % (S_P + 1, S_P + 1))
    srd(a, S_P, S_P, 8 * PART_STRIDE)
    a("s_lshl_b32 s3, s2, 8")
    a("v_add_u32 v0, s3, v0")
    a("v_lshlrev_b32 v1, 2, v0")
    a("v_lshlrev_b32 v2, 3, v0")
    a("v_lshlrev_b32 v3, 4, v0")
    a("buffer_load_dword v4, v1, s[%d:%d], 0 offen" % (S_D, S_D + 3))
    a("buffer_load_dwordx4 v[24:27], v3, s[%d:%d], 0 offen" % (S_M, S_M + 3))
    for k in range(8):
        a("s_mov_b32 s3, %d" % (k * PART_STRIDE))
        a("buffer_load_dwordx2 v[%d:%d], v2, s[%d:%d], s3 offen" % (8 + 2 * k, 9 + 2 * k, S_P, S_P + 3))
    a("s_waitcnt lgkmcnt(0)")
    expand_weights(a)
    a("s_waitcnt vmcnt(9)")
    unpack2(a, 5, 6, 4)
    gates(a, 5, 28, 36, 40)
    gates(a, 6, 28, 44, 48)
    a("s_waitcnt vmcnt(0)")
    for j in range(4):
        a("v_pk_add_f32 v[%d:%d], v[%d:%d], v[%d:%d]" % (8 + 2 * j, 9 + 2 * j, 8 + 2 * j, 9 + 2 * j, 16 + 2 * j, 17 + 2 * j))
    combine(a, [8, 10, 12, 14], 36, 40, 24, 28, 52)
    combine(a, [9, 11, 13, 15], 44, 48, 26, 28, 54)
    a("buffer_store_dwordx4 v[52:55], v3, s[%d:%d], 0 offen" % (S_O, S_O + 3))
    a(done + ":")
    a("s_endpgm")
    return descriptor(name, 56, 100)
```

```python
import sys
from common import *
from params import *
import pass1, pass2, pass3


def build(path, nt_loads=True, group_shift=0, store_flag="", rec_flag=""):
    a = Asm()
    d1 = pass1.gen_pass1(a, "partition_kernel", nt_loads, group_shift, store_flag)
    d2 = pass2.gen_pass2(a, "accumulate_kernel", rec_flag)
    d3 = pass3.gen_pass3(a, "finalize_kernel")
    launches = [("partition_kernel", NWG1, 1024, pass1.LDS1),
                ("accumulate_kernel", 256, 1024, pass2.LDS2),
                ("finalize_kernel", pass3.NWG3, 256, 0)]
    open(path, "w").write(assemble_file(launches, a.text(), [d1, d2, d3]))


if __name__ == "__main__":
    kw = {}
    for arg in sys.argv[2:]:
        k, v = arg.split("=", 1)
        kw[k] = eval(v)
    build(sys.argv[1], **kw)
```
